```python
import torch

def _softmax(x, axis=-1):
    return torch.softmax(x, dim=axis)
def _gelu(x):
    return torch.nn.functional.gelu(x, approximate="tanh")
def _silu(x):
    return torch.nn.functional.silu(x)
def _sigmoid(x):
    return torch.sigmoid(x)
def _layernorm(x, axis=-1, eps=1e-5):
    m = x.mean(dim=axis, keepdim=True)
    v = x.var(dim=axis, keepdim=True, unbiased=False)
    return (x - m) / torch.sqrt(v + eps)
def _scatter_add(tgt, idx, src, axis=0):
    return tgt.clone().index_add_(axis, idx, src)
def _segment_sum(src, seg, n):
    out = torch.zeros((n,) + src.shape[1:], dtype=src.dtype)
    return out.index_add_(0, seg, src)
def _pad(x, pw):
    flat = tuple(v for pair in reversed(pw) for v in pair)
    return torch.nn.functional.pad(x, flat)

kernel_name = 'standalone__mixer_token_mlp__prompt'

def setup_inputs():

    _w = (lambda a: (lambda t: t.to(torch.bfloat16) if t.is_floating_point() else t)(torch.as_tensor(a)))
    B, S, D, F = 1, 2048, 1024, 3584
    return {
        "x": _w((lambda *s: torch.randn(*s, dtype=torch.bfloat16) * 0.05)(B, S, D)),
        "w1": _w((lambda *s: torch.randn(*s, dtype=torch.bfloat16) * 0.2)(S, F) * (S ** -0.5)),
        "b1": _w((lambda *s: torch.randn(*s, dtype=torch.bfloat16) * 1.6)(F) * 0.02),
        "w2": _w((lambda *s: torch.randn(*s, dtype=torch.bfloat16) * 0.05)(F, S) * (F ** -0.5)),
        "b2": _w((lambda *s: torch.randn(*s, dtype=torch.bfloat16) * 0.1)(S) * 0.02),
    }

def reference(x, w1, b1, w2, b2):
    B, S, D = x.shape
    h = _layernorm(x, axis=-1)
    u = torch.einsum("bsd,sf->bdf", h, w1) + b1
    u = _gelu(u)
    y = torch.einsum("bdf,fs->bds", u, w2) + b2
    return (lambda x, *d: x.permute(*d))(y, 0, 2, 1)
```

```python
import struct, sys

NAME = 'standalone__mixer_token_mlp__prompt_kernel'
S_, D_, F_ = 2048, 1024, 3584

WS_E = 0
WS_F1 = 0x1000
WS_F2 = 0x10000
WS_F3 = 0x20000
WS_STAMP = 0x40000
WS_H = 0x100000
WS_U = 0x500000
WS_P = 0xD00000
WS_SIZE = 268435456

W_BASE = 0
ACT_BASE = 81920
NSLOT = 5
LDS_SIZE = 163840

vL16, vAa, vAb = 1, 2, 3
vT = [[4, 5], [6, 7]]
vW = [[8, 9, 10, 11], [12, 13, 14, 15]]
vPollA, vPollD = 16, 17
vB2 = [18, 19]
vOut, vNonce, vFlag, vC0 = 20, 21, 22, 23
vTmp = 24
vAcc = [40, 72]
vBuf = 104
vFifo = 136
NFV = (256 - vFifo) // 8
NF = NFV + 32

SRD_X, SRD_W, SRD_WS, SRD_WSU, SRD_OUT, SRD_B1, SRD_B2, SRD_CODE = 4, [8, 12], 16, 20, 24, 28, 32, 36
sArg = 40
sWv, sNonce, sLdsW, sLdsA = 56, 57, 58, 59
sPat = {(0, 'alt'): 60, (0, 0): 61, (0, 1): 62, (1, 'alt'): 63, (1, 0): 64, (1, 1): 65}
sTA, sTW = 66, 67
sUst = [68, 69]
sF2st = [70, 71]
sF2ld = [72, 73]
sF1st, sF1ld, sF3st, sF3ld = 74, 75, 76, 77
sPown, sPown2, sPpar, sPpar2 = 78, 79, 80, 81
sSpin, sC1, s32k, sSpare = 82, 84, 83, 86
sTmp = 87
sStamp = 40


def f2u(x):
    return struct.unpack('<I', struct.pack('<f', x))[0]


def srd(b):
    return f's[{b}:{b+3}]'


def fifo_reg(entry, off, n):
    if entry < NFV:
        r = vFifo + entry * 8 + off
        return f'v[{r}:{r+n-1}]'
    r = (entry - NFV) * 8 + off
    return f'a[{r}:{r+n-1}]'


class Emit:
    def __init__(self):
        self.lines = []
        self.vm = []
        self.vm_done = 0
        self.lg = []
        self.lg_done = 0

    def __call__(self, s):
        for l in s.strip('\n').split('\n'):
            l = l.strip()
            if l:
                self.lines.append(l if l.endswith(':') else '  ' + l)

    def vmem(self, s, tag):
        self(s)
        self.vm.append(tag)

    def lds(self, s, tag):
        self(s)
        self.lg.append(tag)

    def _need(self, q, done, pred):
        last = -1
        for k in range(len(q) - 1, done - 1, -1):
            if pred(q[k]):
                last = k
                break
        return last

    def wait(self, vm=None, lg=None, force=False):
        parts = []
        if vm is not None:
            last = len(self.vm) - 1 if vm == 'all' else self._need(self.vm, self.vm_done, vm)
            if last >= self.vm_done:
                n = min(len(self.vm) - 1 - last, 63)
                parts.append(f'vmcnt({n})')
                self.vm_done = len(self.vm) - n
        if lg is not None:
            last = len(self.lg) - 1 if lg == 'all' else self._need(self.lg, self.lg_done, lg)
            if last >= self.lg_done or force:
                n = min(len(self.lg) - 1 - last, 15) if last >= self.lg_done else 0
                parts.append(f'lgkmcnt({n})')
                self.lg_done = len(self.lg) - n
        if parts:
            self('s_waitcnt ' + ' '.join(parts))

    def text(self):
        return '\n'.join(self.lines) + '\n'


DEF = dict(
    lam1=44, lam2=44,
    R=12,
    rflag=4,
    wlat=4,
    geluA='pk',
    geluB='pk',
    chkX=31,
    pollX=30,
    stamps=(),
    spin=1 << 16,
    codepf=True,
    flagA_lag=3, flagB_lag=3, flag3_lag=3,
    chkY_lead=2, pollY_lead=3,
    chk3_lead=2, poll3_lead=3,
)


def build_units(c):
    l1, l2 = c['lam1'], c['lam2']
    u = []
    F = 64 - l1
    for n in range(F):
        u += [(0, 0, n), (0, 1, n)]
    u += [(0, 0, n) for n in range(F, 64)]
    u += [(0, 1, n) for n in range(F, 64)]
    u += [(1, 0, n) for n in range(l2)]
    for n in range(56 - l2):
        u += [(1, 0, n + l2), (1, 1, n)]
    u += [(1, 1, n) for n in range(56 - l2, 56)]
    assert len(u) == 240
    return u


def gelu_ops(half, mode):
    ops = []
    A = vAcc[half]
    for i in range(4):
        base = A + i * 8
        T = vTmp
        O = vTmp + 8 + (i & 1) * 4
        if mode == 'pk':
            P = [f'v[{base+2*k}:{base+2*k+1}]' for k in range(4)]
            Q = [f'v[{T+2*k}:{T+2*k+1}]' for k in range(4)]
            ops += [(f'v_pk_mul_f32 {Q[k]}, {P[k]}, {P[k]}', 'v') for k in range(4)]
            ops += [(f'v_pk_fma_f32 {Q[k]}, {Q[k]}, s[{sC1}:{sC1+1}], v[{vFlag}:{vC0}] op_sel:[0,0,1] op_sel_hi:[1,0,1]', 'v') for k in range(4)]
            ops += [(f'v_pk_mul_f32 {Q[k]}, {Q[k]}, {P[k]}', 'v') for k in range(4)]
            ops += [(f'v_exp_f32 v{T+k}, v{T+k}', 't') for k in range(8)]
            ops += [(f'v_pk_add_f32 {Q[k]}, {Q[k]}, 1.0 op_sel_hi:[1,0]', 'v') for k in range(4)]
            ops += [(f'v_rcp_f32 v{T+k}, v{T+k}', 't') for k in range(8)]
            ops += [(f'v_pk_mul_f32 {Q[k]}, {Q[k]}, {P[k]}', 'v') for k in range(4)]
        else:
            ops += [(f'v_mul_f32 v{T+k}, v{base+k}, v{base+k}', 'v') for k in range(8)]
            ops += [(f'v_fma_f32 v{T+k}, v{T+k}, s{sC1}, v{vC0}', 'v') for k in range(8)]
            ops += [(f'v_mul_f32 v{T+k}, v{T+k}, v{base+k}', 'v') for k in range(8)]
            ops += [(f'v_exp_f32 v{T+k}, v{T+k}', 't') for k in range(8)]
            ops += [(f'v_add_f32 v{T+k}, 1.0, v{T+k}', 'v') for k in range(8)]
            ops += [(f'v_rcp_f32 v{T+k}, v{T+k}', 't') for k in range(8)]
            ops += [(f'v_mul_f32 v{T+k}, v{T+k}, v{base+k}', 'v') for k in range(8)]
        ops += [(f'v_cvt_pk_bf16_f32 v{O+k}, v{T+2*k}, v{T+2*k+1}', 'v') for k in range(4)]
        ops.append((f'buffer_store_dwordx4 v[{O}:{O+3}], v{vL16}, {srd(SRD_WSU)}, s{sUst[half]} offen offset:{i*1024} sc1', ('s', ('U', half))))
    return ops


def generate(**kw):
    c = dict(DEF)
    c.update(kw)
    units = build_units(c)
    NU = len(units)
    NG = NU // 4
    l1, l2 = c['lam1'], c['lam2']
    R = c['R']

    first_use, last_use = {}, {}
    for ui, (g, h, n) in enumerate(units):
        b = n + 64 * g
        first_use.setdefault(b, ui)
        last_use[b] = ui
    NP = 60
    TRG = [0, 2, 4, 6, 8, 10, 12, 14]
    TRI, DMI = {}, {}
    for p in range(NP):
        if p < NSLOT:
            DMI[p] = -R - 1
        else:
            DMI[p] = max(DMI[p - 1] + 1 if p > NSLOT else -10**9, TRI[p - NSLOT] + 1)
        j = TRI[p - 1] + 1 if p else -R
        if j >= 0:
            j = max(j, DMI[p] + c['wlat'])
        else:
            j = max(j, DMI[p] + 1)
        while True:
            ok = True
            for e in range(2):
                b = 2 * p + e
                if b - NF >= 0:
                    lastm = last_use[b - NF] * 8 + 7
                    if j < 0 or 32 * j + TRG[4 * e] < lastm:
                        ok = False
            if ok:
                break
            j += 1
        TRI[p] = j
        for e in range(2):
            b = 2 * p + e
            assert 32 * j + TRG[4 * e + 3] + 4 <= first_use[b] * 8 or j < 0, (p, j, first_use[b])
    c['TRI'], c['DMI'] = TRI, DMI

    gX2 = 32
    gY2 = (128 + l2) // 4
    chkX = c['chkX']
    chkY = gY2 - c['chkY_lead']
    DMA_A = {}
    for g in range(NG):
        j = g - (NSLOT - 1)
        j = max(j, -1)
        if g >= gX2:
            j = max(j, chkX)
        if g >= gY2:
            j = max(j, chkY)
        DMA_A[g] = j

    def act_pattern(g):
        us = units[4 * g:4 * g + 4]
        gm = us[0][0]
        if all(x[1] == us[0][1] for x in us):
            assert [x[2] for x in us] == list(range(us[0][2], us[0][2] + 4))
            return sPat[(gm, us[0][1])], us[0][2] * 4096
        lag = 0 if gm == 0 else l2
        n = us[1][2]
        assert us == [(gm, 0, n + lag), (gm, 1, n), (gm, 0, n + 1 + lag), (gm, 1, n + 1)], us
        return sPat[(gm, 'alt')], n * 4096

    def act_dma(e, g):
        sp, lit = act_pattern(g)
        slot = g % NSLOT
        out = []

        def first(e):
            e(f's_add_u32 m0, s{sLdsA}, {slot*16384}')
            e(f's_add_u32 s{sTA}, s{sp}, {lit}')
        out.append(first)
        for k in range(4):
            def dma(e, k=k):
                e.vmem(f'buffer_load_dwordx4 v{vL16}, {srd(SRD_WS)}, s{sTA} offen offset:{k*1024} sc1 lds', ('A', g))
            out.append(dma)
        return out

    def w_src(p):
        gm = 0 if p < 32 else 1
        stride = 7168 if gm == 0 else 4096
        return gm, (p - 32 * gm) * 64 * stride

    def w_dma(e, p):
        gm, off = w_src(p)
        slot = p % NSLOT
        out = []

        def first(e):
            e(f's_add_u32 m0, s{sLdsW}, {slot*16384}')
            e(f's_mov_b32 s{sTW}, {off}')
        out.append(first)
        for k in range(4):
            def dma(e, k=k):
                e.vmem(f'buffer_load_dwordx4 v{vW[gm][k]}, {srd(SRD_W[gm])}, s{sTW} offen offset:{k*1024} lds', ('W', p))
            out.append(dma)
        return out

    def w_tr(p):
        out = []
        for e_ in range(2):
            b = 2 * p + e_
            for t in range(2):
                for j in range(2):
                    def tr(e, b=b, t=t, j=j, e_=e_):
                        off = W_BASE + (p % NSLOT) * 16384 + e_ * 8192 + j * 4096
                        hi = 1 if off >= 40960 else 0
                        e.lds(f'ds_read_b64_tr_b16 {fifo_reg(b % NF, 4*t + 2*j, 2)}, v{vT[t][hi]} offset:{off - hi*40960}', ('T', b, t))
                    out.append(tr)
        return out

    def act_read(u, i):
        def rd(e):
            off = ((u // 4) % NSLOT) * 16384 + (u % 4) * 4096 + i * 1024
            hi = 1 if off >= 40960 else 0
            r = vBuf + ((4 * u + i) % 8) * 4
            e.lds(f'ds_read_b128 v[{r}:{r+3}], v{vAb if hi else vAa} offset:{off - hi*40960}', ('R', u, i))
        return rd

    e = Emit()
    spins = []

    def check(e, name, load):
        e(f'v_cmp_ne_u32 vcc, s{sNonce}, v{vPollD}')
        e(f's_cbranch_vccnz L_spin_{name}')
        e(f'L_ret_{name}:')
        spins.append((name, load))

    nstamp = [0]

    c['stamp_order'] = []

    def stamp(e, name):
        c['stamp_order'].append(name)
        k = nstamp[0]
        nstamp[0] += 1
        assert k < 8
        e(f's_memrealtime s[{sStamp+2*k}:{sStamp+2*k+1}]')

    diag = len(c['stamps']) > 0

    T0 = sTmp
    e(f'''
    s_cmp_ge_u32 s2, 256
    s_cbranch_scc1 L_end
    s_load_dwordx16 s[{sArg}:{sArg+15}], s[0:1], 0
    ''')
    if diag:
        e('s_memrealtime s[98:99]')
    e(f'''
    v_lshrrev_b32 v24, 6, v0
    v_and_b32 v0, 63, v0
    v_readfirstlane_b32 s{sWv}, v24
    v_lshlrev_b32 v{vL16}, 4, v0
    v_lshlrev_b32 v25, 2, v0
    s_lshr_b32 s{T0}, s2, 2
    s_and_b32 s{T0+1}, s2, 3
    s_lshl_b32 s{T0+2}, s{T0}, 16
    s_lshl_b32 s{T0+3}, s{T0+1}, 13
    s_add_u32 s{T0+2}, s{T0+2}, s{T0+3}
    s_lshl_b32 s{T0+3}, s{sWv}, 9
    s_add_u32 s{T0+2}, s{T0+2}, s{T0+3}
    s_add_u32 s{T0+3}, s{T0+2}, 4096
    s_add_u32 s{T0+4}, s{T0+2}, 32768
    s_add_u32 s{T0+5}, s{T0+2}, 36864
    s_mov_b32 s{SRD_X+2}, {S_*D_*2}
    s_mov_b32 s{SRD_X+3}, 0x20000
    s_mov_b32 s{SRD_WS+2}, {WS_SIZE}
    s_mov_b32 s{SRD_WS+3}, 0x20000
    s_waitcnt lgkmcnt(0)
    s_mov_b32 s{SRD_X}, s{sArg}
    s_mov_b32 s{SRD_X+1}, s{sArg+1}
    s_mov_b32 s{SRD_WS}, s{sArg+14}
    s_mov_b32 s{SRD_WS+1}, s{sArg+15}
    ''')
    XR = vAcc[0]
    for rho in range(8):
        so = T0 + 2 + (rho >> 2) * 2 + ((rho & 3) >> 1)
        for a in range(2):
            e.vmem(f'buffer_load_dword v{XR + 2*rho + a}, v25, {srd(SRD_X)}, s{so} offen offset:{(rho & 1)*2048 + a*256}', ('X', rho))
    e.vmem(f'buffer_load_dword v{vNonce}, off, {srd(SRD_WS)}, 0 sc1', ('E',))
    xcd, idx, Tt, ft, X1, T2t, st, kh = range(T0 + 2, T0 + 9 + 1)[:8]
    e(f'''
    s_and_b32 s{xcd}, s2, 7
    s_lshr_b32 s{idx}, s2, 3
    s_cmp_ge_u32 s{idx}, 28
    s_cselect_b32 s{sSpare}, 1, 0
    s_cselect_b32 s{SRD_WSU+2}, 0, {WS_SIZE}
    s_mov_b32 s{SRD_WSU}, s{sArg+14}
    s_mov_b32 s{SRD_WSU+1}, s{sArg+15}
    s_mov_b32 s{SRD_WSU+3}, 0x20000
    s_and_b32 s{Tt}, s{xcd}, 1
    s_lshl_b32 s{Tt}, s{Tt}, 2
    s_and_b32 s{T2t}, s{idx}, 3
    s_add_u32 s{Tt}, s{Tt}, s{T2t}
    s_lshr_b32 s{ft}, s{xcd}, 1
    s_mul_i32 s{ft}, s{ft}, 7
    s_lshr_b32 s{st}, s{idx}, 2
    s_min_u32 s{X1}, s{st}, 6
    s_add_u32 s{ft}, s{ft}, s{X1}
    s_lshr_b32 s{X1}, s{xcd}, 2
    s_lshl_b32 s{kh}, s{X1}, 3
    s_add_u32 s{st}, s{st}, s{kh}
    s_lshr_b32 s{kh}, s{xcd}, 1
    s_and_b32 s{kh}, s{kh}, 1
    s_lshl_b32 s{kh}, s{kh}, 2
    s_add_u32 s{T2t}, s{T2t}, s{kh}
    s_and_b32 s{kh}, s{xcd}, 1
    ''')
    e(f'''
    s_lshl_b32 s{idx}, s{ft}, 8
    s_add_u32 s{SRD_W[0]}, s{sArg+2}, s{idx}
    s_addc_u32 s{SRD_W[0]+1}, s{sArg+3}, 0
    s_sub_u32 s{SRD_W[0]+2}, {S_*F_*2}, s{idx}
    s_mov_b32 s{SRD_W[0]+3}, 0x20000
    s_mul_i32 s{idx}, s{kh}, {1792*4096}
    s_lshl_b32 s{xcd}, s{st}, 8
    s_add_u32 s{idx}, s{idx}, s{xcd}
    s_add_u32 s{SRD_W[1]}, s{sArg+6}, s{idx}
    s_addc_u32 s{SRD_W[1]+1}, s{sArg+7}, 0
    s_sub_u32 s{SRD_W[1]+2}, {S_*F_*2}, s{idx}
    s_mov_b32 s{SRD_W[1]+3}, 0x20000
    s_lshl_b32 s{sLdsW}, s{sWv}, 12
    s_add_u32 s{sLdsA}, s{sLdsW}, {ACT_BASE}
    ''')
    if W_BASE:
        e(f's_add_u32 s{sLdsW}, s{sLdsW}, {W_BASE}')
    e(f'''
    v_lshrrev_b32 v26, 4, v0
    v_and_b32 v27, 15, v0
    v_lshrrev_b32 v28, 1, v27
    v_xor_b32 v28, v28, v26
    v_lshlrev_b32 v28, 5, v28
    v_and_b32 v29, 1, v0
    v_lshl_or_b32 v28, v29, 4, v28
    v_xor_b32 v29, 0x80, v28
    s_lshl_b32 s{idx}, s{sWv}, 4
    v_add_u32 v30, s{idx}, v26
    ''')
    for gm, stride in ((0, 7168), (1, 4096)):
        e(f'v_mul_u32_u24 v31, {stride}, v30')
        for k in range(4):
            e(f'v_add_u32 v{vW[gm][k]}, v31, v{28 + (k & 1)}')
            if k:
                e(f'v_add_u32 v{vW[gm][k]}, {k*4*stride - k*1024}, v{vW[gm][k]}')
    e(f'''
    s_cmp_lg_u32 s{sSpare}, 0
    s_cbranch_scc1 L_skipw
    ''')
    for p in range(NSLOT):
        for f in w_dma(e, p):
            f(e)
    e('L_skipw:')
    e(f'''
    s_mov_b32 s{SRD_B1}, s{sArg+4}
    s_mov_b32 s{SRD_B1+1}, s{sArg+5}
    s_mov_b32 s{SRD_B1+2}, {F_*2}
    s_mov_b32 s{SRD_B1+3}, 0x20000
    s_mov_b32 s{SRD_B2}, s{sArg+8}
    s_mov_b32 s{SRD_B2+1}, s{sArg+9}
    s_mov_b32 s{SRD_B2+2}, {S_*2}
    s_mov_b32 s{SRD_B2+3}, 0x20000
    s_lshl_b32 s{idx}, s{st}, 18
    s_lshl_b32 s{xcd}, s{T2t}, 8
    s_add_u32 s{idx}, s{idx}, s{xcd}
    s_xor_b32 s{xcd}, s{kh}, 1
    s_lshl_b32 s{xcd}, s{xcd}, 7
    s_add_u32 s{idx}, s{idx}, s{xcd}
    s_add_u32 s{SRD_OUT}, s{sArg+10}, s{idx}
    s_addc_u32 s{SRD_OUT+1}, s{sArg+11}, 0
    s_sub_u32 s{SRD_OUT+2}, {S_*D_*2}, s{idx}
    s_mov_b32 s{SRD_OUT+3}, 0x20000
    s_mov_b32 s{s32k}, 32768
    s_mov_b32 s{sC1}, {f2u(-2*0.7978845608028654*1.4426950408889634*0.044715)}
    s_mov_b32 s{sC1+1}, s{sC1}
    v_mov_b32 v{vC0}, {f2u(-2*0.7978845608028654*1.4426950408889634)}
    ''')
    a0, a1 = idx, xcd
    e(f'''
    s_lshl_b32 s{a0}, s{Tt}, 1
    s_add_u32 s{a1}, s{a0}, s{X1}
    s_lshl_b32 s{a1}, s{a1}, 18
    s_add_u32 s{sPat[(0,0)]}, s{a1}, {WS_H}
    s_xor_b32 s{sPat[(0,1)]}, s{sPat[(0,0)]}, 0x40000
    s_and_b32 s{a1}, s{sWv}, 1
    s_cmp_eq_u32 s{a1}, 0
    s_cselect_b32 s{sPat[(0,'alt')]}, s{sPat[(0,0)]}, s{sPat[(0,1)]}
    s_lshr_b32 s{a1}, s{sWv}, 1
    s_lshl_b32 s{a1}, s{a1}, 12
    s_add_u32 s{sPat[(0,'alt')]}, s{sPat[(0,'alt')]}, s{a1}
    s_lshl_b32 s{a1}, s{sWv}, 12
    s_add_u32 s{sPat[(0,0)]}, s{sPat[(0,0)]}, s{a1}
    s_add_u32 s{sPat[(0,1)]}, s{sPat[(0,1)]}, s{a1}
    s_add_u32 s{a1}, s{a0}, s{X1}
    s_mul_i32 s{sUst[0]}, s{a1}, 112
    s_xor_b32 s{a1}, s{a1}, 1
    s_mul_i32 s{sUst[1]}, s{a1}, 112
    s_lshl_b32 s{a1}, s{ft}, 2
    s_add_u32 s{a1}, s{a1}, s{sWv}
    s_add_u32 s{sUst[0]}, s{sUst[0]}, s{a1}
    s_add_u32 s{sUst[1]}, s{sUst[1]}, s{a1}
    s_lshl_b32 s{sF2st[0]}, s{sUst[0]}, 5
    s_lshl_b32 s{sF2st[1]}, s{sUst[1]}, 5
    s_add_u32 s{sF2st[0]}, s{sF2st[0]}, {WS_F2}
    s_add_u32 s{sF2st[1]}, s{sF2st[1]}, {WS_F2}
    s_lshl_b32 s{sUst[0]}, s{sUst[0]}, 12
    s_lshl_b32 s{sUst[1]}, s{sUst[1]}, 12
    s_add_u32 s{sUst[0]}, s{sUst[0]}, {WS_U}
    s_add_u32 s{sUst[1]}, s{sUst[1]}, {WS_U}
    s_lshl_b32 s{sF1st}, s{sWv}, 13
    s_lshl_b32 s{a1}, s2, 5
    s_add_u32 s{sF1st}, s{sF1st}, s{a1}
    s_add_u32 s{sF1st}, s{sF1st}, {WS_F1}
    s_lshr_b32 s{sF1ld}, s{Tt}, 1
    s_lshl_b32 s{sF1ld}, s{sF1ld}, 13
    s_lshl_b32 s{a1}, s{sWv}, 11
    s_add_u32 s{sF1ld}, s{sF1ld}, s{a1}
    s_add_u32 s{sF1ld}, s{sF1ld}, {WS_F1}
    s_lshl_b32 s{a0}, s{T2t}, 1
    s_add_u32 s{a0}, s{a0}, s{kh}
    s_mul_i32 s{sPat[(1,0)]}, s{a0}, 112
    s_xor_b32 s{a0}, s{a0}, 1
    s_mul_i32 s{sPat[(1,1)]}, s{a0}, 112
    s_mul_i32 s{a0}, s{kh}, 56
    s_add_u32 s{sPat[(1,0)]}, s{sPat[(1,0)]}, s{a0}
    s_add_u32 s{sPat[(1,1)]}, s{sPat[(1,1)]}, s{a0}
    s_mul_i32 s{a0}, s{sWv}, 14
    s_add_u32 s{sF2ld[0]}, s{sPat[(1,0)]}, s{a0}
    s_add_u32 s{sF2ld[1]}, s{sPat[(1,1)]}, s{a0}
    s_lshl_b32 s{sF2ld[0]}, s{sF2ld[0]}, 5
    s_lshl_b32 s{sF2ld[1]}, s{sF2ld[1]}, 5
    s_add_u32 s{sF2ld[0]}, s{sF2ld[0]}, {WS_F2}
    s_add_u32 s{sF2ld[1]}, s{sF2ld[1]}, {WS_F2}
    s_lshl_b32 s{sPat[(1,0)]}, s{sPat[(1,0)]}, 12
    s_lshl_b32 s{sPat[(1,1)]}, s{sPat[(1,1)]}, 12
    s_add_u32 s{sPat[(1,0)]}, s{sPat[(1,0)]}, {WS_U}
    s_add_u32 s{sPat[(1,1)]}, s{sPat[(1,1)]}, {WS_U}
    s_add_u32 s{a0}, s{sPat[(1,0)]}, {l2*4096}
    s_and_b32 s{a1}, s{sWv}, 1
    s_cmp_eq_u32 s{a1}, 0
    s_cselect_b32 s{sPat[(1,'alt')]}, s{a0}, s{sPat[(1,1)]}
    s_lshr_b32 s{a1}, s{sWv}, 1
    s_lshl_b32 s{a1}, s{a1}, 12
    s_add_u32 s{sPat[(1,'alt')]}, s{sPat[(1,'alt')]}, s{a1}
    s_lshl_b32 s{a1}, s{sWv}, 12
    s_add_u32 s{sPat[(1,0)]}, s{sPat[(1,0)]}, s{a1}
    s_add_u32 s{sPat[(1,1)]}, s{sPat[(1,1)]}, s{a1}
    s_lshl_b32 s{a0}, s2, 2
    s_add_u32 s{a0}, s{a0}, s{sWv}
    s_xor_b32 s{a1}, s{a0}, 4
    s_lshl_b32 s{sF3st}, s{a0}, 5
    s_lshl_b32 s{sF3ld}, s{a1}, 5
    s_add_u32 s{sF3st}, s{sF3st}, {WS_F3}
    s_add_u32 s{sF3ld}, s{sF3ld}, {WS_F3}
    s_lshl_b32 s{sPown}, s{a0}, 13
    s_lshl_b32 s{sPpar}, s{a1}, 13
    s_add_u32 s{sPown}, s{sPown}, {WS_P}
    s_add_u32 s{sPpar}, s{sPpar}, {WS_P}
    s_add_u32 s{sPown2}, s{sPown}, 4096
    s_add_u32 s{sPpar2}, s{sPpar}, 4096
    ''')
    e(f'''
    s_lshl_b32 s{a0}, s{ft}, 8
    s_lshl_b32 s{a1}, s{sWv}, 6
    s_add_u32 s{a0}, s{a0}, s{a1}
    v_lshlrev_b32 v32, 3, v26
    ''')
    e.vmem(f'buffer_load_dwordx2 v[36:37], v32, {srd(SRD_B1)}, s{a0} offen', ('B',))
    e.vmem(f'buffer_load_dwordx2 v[38:39], v32, {srd(SRD_B1)}, s{a0} offen offset:32', ('B',))
    e(f'''
    s_lshl_b32 s{a0}, s{st}, 8
    s_add_u32 s{a0}, s{a0}, s{a1}
    v_lshlrev_b32 v33, 1, v27
    ''')
    e.vmem(f'buffer_load_ushort v{vB2[0]}, v33, {srd(SRD_B2)}, s{a0} offen', ('B',))
    e.vmem(f'buffer_load_ushort v{vB2[1]}, v33, {srd(SRD_B2)}, s{a0} offen offset:32', ('B',))
    ncode = 0
    if c['codepf']:
        e(f'''
        s_getpc_b64 s[{SRD_CODE}:{SRD_CODE+1}]
        L_pc:
        s_and_b32 s{SRD_CODE+1}, s{SRD_CODE+1}, 0xffff
        s_mov_b32 s{SRD_CODE+2}, L_end-L_pc
        s_mov_b32 s{SRD_CODE+3}, 0x20000
        s_lshr_b32 s{a0}, s2, 3
        s_and_b32 s{a0}, s{a0}, 1
        s_lshl_b32 s{a0}, s{a0}, 2
        s_add_u32 s{a0}, s{a0}, s{sWv}
        s_lshl_b32 s{a0}, s{a0}, 13
        v_lshlrev_b32 v34, 7, v0
        ''')
        e.vmem(f'buffer_load_dword v35, v34, {srd(SRD_CODE)}, s{a0} offen', ('C',))
        ncode = 1
    e(f'''
    v_add_u32 v{vAa}, {ACT_BASE}, v{vL16}
    v_add_u32 v{vAb}, {ACT_BASE + 40960}, v{vL16}
    v_lshrrev_b32 v28, 2, v0
    v_and_b32 v29, 7, v28
    s_lshl_b32 s{a0}, s{sWv}, 1
    v_xor_b32 v29, s{a0}, v29
    v_lshlrev_b32 v29, 5, v29
    v_lshl_or_b32 v29, v28, 8, v29
    v_and_b32 v28, 3, v0
    v_lshl_or_b32 v{vT[0][0]}, v28, 3, v29
    v_add_u32 v{vT[0][1]}, 40960, v{vT[0][0]}
    v_xor_b32 v{vT[1][0]}, 32, v{vT[0][0]}
    v_add_u32 v{vT[1][1]}, 40960, v{vT[1][0]}
    v_min_u32 v{vPollA}, 13, v0
    v_lshlrev_b32 v{vPollA}, 5, v{vPollA}
    s_lshl_b32 s{a0}, s{sWv}, 5
    v_add_u32 v28, s{a0}, v27
    v_lshlrev_b32 v28, 11, v28
    v_lshl_or_b32 v{vOut}, v26, 4, v28
    v_cmp_eq_u32 vcc, 0, v0
    v_bfrev_b32 v28, 1
    s_mov_b32 s{a0}, 0x3f803f80
    v_cndmask_b32 v{vFlag}, v28, 0, vcc
    ''')
    SR = vAcc[1]
    UP = vBuf
    nyoung = 20
    nx_after = len(e.vm) - 17
    e(f'''
    s_cmp_lg_u32 s{sSpare}, 0
    s_cbranch_scc0 L_xw_main
    s_waitcnt vmcnt({nx_after - nyoung})
    L_xw_main:
    s_waitcnt vmcnt({nx_after})
    ''')
    e.vm_done = 17
    e(f'v_readfirstlane_b32 s{sNonce}, v{vNonce}')
    for rho in range(8):
        e(f'v_dot2_f32_bf16 v{SR+rho}, v{XR+2*rho}, s{a0}, 0')
        e(f'v_dot2_f32_bf16 v{SR+8+rho}, v{XR+2*rho}, v{XR+2*rho}, 0')
    for rho in range(8):
        e(f'v_dot2_f32_bf16 v{SR+rho}, v{XR+2*rho+1}, s{a0}, v{SR+rho}')
        e(f'v_dot2_f32_bf16 v{SR+8+rho}, v{XR+2*rho+1}, v{XR+2*rho+1}, v{SR+8+rho}')
    e(f's_add_u32 s{sNonce}, s{sNonce}, 1')
    e('s_nop 2')
    for rho in range(8):
        e(f'v_permlane32_swap_b32 v{SR+rho}, v{SR+8+rho}')
    for rho in range(8):
        e(f'v_add_f32 v{SR+rho}, v{SR+rho}, v{SR+8+rho}')
    e(f'v_mov_b32 v{vNonce}, s{sNonce}')
    e('s_nop 0')
    for rho in range(4):
        e(f'v_permlane16_swap_b32 v{SR+rho}, v{SR+4+rho}')
    for rho in range(4):
        e(f'v_add_f32 v{SR+rho}, v{SR+rho}, v{SR+4+rho}')
    for sh in (8, 4, 2, 1):
        for rho in range(4):
            e(f'v_add_f32_dpp v{SR+rho}, v{SR+rho}, v{SR+rho} row_ror:{sh} row_mask:0xf bank_mask:0xf')
    e(f'''
    s_lshl_b32 s{a1}, s{sWv}, 6
    s_add_u32 s{a1}, s{a1}, {ACT_BASE}
    v_lshl_add_u32 v28, v26, 4, s{a1}
    s_mov_b32 exec_lo, 0x10001
    s_mov_b32 exec_hi, 0x10001
    ds_write_b128 v28, v[{SR}:{SR+3}]
    s_mov_b64 exec, -1
    v_and_b32 v28, 7, v0
    v_lshlrev_b32 v28, 2, v28
    v_add_u32 v28, {ACT_BASE}, v28
    s_waitcnt lgkmcnt(0)
    s_barrier
    ds_read2_b32 v[{SR}:{SR+1}], v28 offset0:0 offset1:16
    ds_read2_b32 v[{SR+2}:{SR+3}], v28 offset0:32 offset1:48
    ds_read2_b32 v[{SR+4}:{SR+5}], v28 offset0:8 offset1:24
    ds_read2_b32 v[{SR+6}:{SR+7}], v28 offset0:40 offset1:56
    ''')
    for a in range(2):
        for rho in range(8):
            e(f'v_lshlrev_b32 v{UP + (2*a)*8 + rho}, 16, v{XR+2*rho+a}')
            e(f'v_and_b32 v{UP + (2*a+1)*8 + rho}, 0xffff0000, v{XR+2*rho+a}')
    e(f'''
    s_waitcnt lgkmcnt(0)
    v_add_f32 v{SR}, v{SR}, v{SR+1}
    v_add_f32 v{SR+2}, v{SR+2}, v{SR+3}
    v_add_f32 v{SR+4}, v{SR+4}, v{SR+5}
    v_add_f32 v{SR+6}, v{SR+6}, v{SR+7}
    v_add_f32 v{SR}, v{SR}, v{SR+2}
    v_add_f32 v{SR+4}, v{SR+4}, v{SR+6}
    v_mul_f32 v{SR}, {f2u(1.0/1024)}, v{SR}
    v_mul_f32 v{SR+4}, {f2u(1.0/1024)}, v{SR+4}
    v_fma_f32 v{SR+4}, -v{SR}, v{SR}, v{SR+4}
    v_max_f32 v{SR+4}, 0, v{SR+4}
    v_add_f32 v{SR+4}, {f2u(1e-5)}, v{SR+4}
    v_rsq_f32 v{SR+4}, v{SR+4}
    s_nop 0
    v_mul_f32 v{SR}, v{SR}, v{SR+4}
    s_nop 1
    ''')
    for rho in range(8):
        e(f'v_mov_b32_dpp v{XR+rho}, v{SR+4} row_newbcast:{rho} row_mask:0xf bank_mask:0xf')
        e(f'v_mov_b32_dpp v{XR+8+rho}, v{SR} row_newbcast:{rho} row_mask:0xf bank_mask:0xf')
    e(f'''
    v_lshrrev_b32 v28, 5, v0
    v_lshlrev_b32 v28, 18, v28
    v_and_b32 v29, 1, v26
    v_lshl_or_b32 v28, v29, 11, v28
    v_lshl_or_b32 v28, v27, 4, v28
    s_lshl_b32 s{a0}, s{sWv}, 20
    s_lshr_b32 s{a1}, s2, 2
    s_lshl_b32 s{a1}, s{a1}, 12
    s_add_u32 s{a0}, s{a0}, s{a1}
    s_and_b32 s{a1}, s2, 3
    s_lshl_b32 s{a1}, s{a1}, 8
    s_add_u32 s{a0}, s{a0}, s{a1}
    s_add_u32 s{a0}, s{a0}, {WS_H}
    s_add_u32 s{a1}, s{a0}, 0x80000
    ''')
    for q in range(4):
        for rho in range(8):
            e(f'v_fma_f32 v{UP+q*8+rho}, v{UP+q*8+rho}, v{XR+rho}, -v{XR+8+rho}')
        O = SR + 8 + q * 4
        for k in range(4):
            e(f'v_cvt_pk_bf16_f32 v{O+k}, v{UP+q*8+2*k}, v{UP+q*8+2*k+1}')
        e.vmem(f'buffer_store_dwordx4 v[{O}:{O+3}], v28, {srd(SRD_WS)}, s{a0 if q < 2 else a1} offen offset:{(q & 1)*1024} sc1', ('H',))
    e(f'''
    s_cmp_lg_u32 s{sSpare}, 0
    s_cbranch_scc1 L_spare
    ''')
    e.wait(vm=lambda t: t[0] == 'B')
    for t in range(2):
        for k in range(2):
            e(f'v_lshlrev_b32 v{vTmp+4*t+2*k}, 16, v{36+2*t+k}')
            e(f'v_and_b32 v{vTmp+4*t+2*k+1}, 0xffff0000, v{36+2*t+k}')
    if diag and 'p0' in c['stamps']:
        stamp(e, 'p0')
        e('s_waitcnt lgkmcnt(0)')

    f1load = f'buffer_load_dword v{vPollD}, v32, {srd(SRD_WS)}, s{sF1ld} offen sc1'
    e(f'v_lshlrev_b32 v32, 5, v0')
    for j in range(-R, 0):
        trp = [p for p in range(NP) if TRI[p] == j]
        dmp = [p for p in range(NP) if DMI[p] == j]
        last = (j == -1)
        if last:
            e.vmem(f1load, ('P', 'f1'))
        e.wait(vm=lambda t: (t[0] == 'W' and t[1] in trp) or (last and t == ('P', 'f1')), lg='all')
        if last:
            check(e, 'f1', f1load)
            if diag and 'f1' in c['stamps']:
                stamp(e, 'f1')
                e('s_waitcnt lgkmcnt(0)')
        e('s_barrier')
        if last:
            for g in range(NG):
                if DMA_A[g] == -1:
                    for f in act_dma(e, g):
                        f(e)
        for p in dmp:
            for f in w_dma(e, p):
                f(e)
        for p in trp:
            for f in w_tr(p):
                f(e)
        if j == -R + c['rflag']:
            e.wait(vm=lambda t: t[0] == 'H')
            e.vmem(f'buffer_store_dword v{vNonce}, v{vFlag}, {srd(SRD_WS)}, s{sF1st} offen sc1', ('F',))
            if diag and 'fl1' in c['stamps']:
                stamp(e, 'fl1')
                e('s_waitcnt lgkmcnt(0)')
                e.lg_done = len(e.lg)

    fill = {}
    seq = [0]

    def at(gap, f, prio=5):
        fill.setdefault(gap, []).append((prio, seq[0], f))
        seq[0] += 1

    RG = [[-8, -7, -6, -5], [-4, -3, -2, -1], [1, 3, 5, 7], [9, 11, 13, 15]]
    DG = [-6, -2, 2, 6, 10, 14, 18, 21]
    J0 = min(c['pollX'], chkX)
    lateB = c.get('lateB', False)

    def bgap(j):
        if j == gX2 and lateB:
            return 32 * j - 1
        return 32 * j - 9

    def clampg(j, g):
        return max(g, bgap(j))

    f2load = [f'buffer_load_dword v{vPollD}, v{vPollA}, {srd(SRD_WS)}, s{sF2ld[h]} offen sc1' for h in range(2)]
    f3load = f'buffer_load_dword v{vPollD}, off, {srd(SRD_WS)}, s{sF3ld} sc1'
    jXlast = max(ui for ui, x in enumerate(units) if x[:2] == (1, 0))
    chk3 = NG - c['chk3_lead']
    pre_barrier = {j: [] for j in range(NG + 1)}
    extra_vm = {j: [] for j in range(NG + 1)}
    post_wait = {j: [] for j in range(NG + 1)}

    def mk_barrier(j):
        def f(e):
            if j == J0:
                e('L_join:')
            if diag and j in c['stamps']:
                stamp(e, j)
            trp = [p for p in range(NP) if TRI[p] == j]
            e.wait(vm=lambda t: t == ('A', j) or (t[0] == 'W' and t[1] in trp) or t in extra_vm[j], lg='all',
                   force=(diag and j in c['stamps']))
            for g_ in post_wait[j]:
                g_(e)
            e('s_barrier')
        return f

    for j in range(NG):
        at(bgap(j), mk_barrier(j), prio=3)
        for k in range(4):
            for i in range(4):
                at(clampg(j, 32 * j + RG[k][i]), act_read(4 * j + k, i))
        for p in range(NP):
            if TRI[p] == j:
                for q, f in enumerate(w_tr(p)):
                    at(clampg(j, 32 * j + TRG[q]), f)
        dl = []
        for g in range(NG):
            if DMA_A[g] == j:
                dl.append(act_dma(e, g))
        for p in range(NP):
            if DMI[p] == j:
                dl.append(w_dma(e, p))
        nd = 4 * len(dl)
        if nd <= 8:
            gaps = DG[:nd] if nd == 8 else [DG[2 * k] for k in range(nd)]
        else:
            gaps = [-8 + (k * 30) // nd for k in range(nd)]
        k = 0
        for d in dl:
            for q in range(4):
                gp = clampg(j, 32 * j + gaps[k])
                if q == 0:
                    at(gp, d[0], prio=7)
                at(gp, d[1 + q], prio=7)
                k += 1

    def place_ops(ops, gap0, mode):
        g = gap0
        used = 0
        for ins, kind in ops:
            if isinstance(kind, tuple):
                at(g, (lambda e, ins=ins, kind=kind: e.vmem(ins, kind[1])), prio=1)
                continue
            w = 2 if kind == 't' else 1
            if mode != 'pk' and used + w > mode:
                g += 1
                used = 0
            used += w
            at(g, (lambda e, ins=ins: e(ins)), prio=1)
        return g

    uXl = max(ui for ui, x in enumerate(units) if x[:2] == (0, 0))
    uYl = 127
    nop8 = [('s_nop 7', 'v')]
    gA = place_ops(gelu_ops(0, c['geluA']), uXl * 8 + 7 + 8, c['geluA'])
    if lateB or c['geluB'] == 'pk0':
        gB = place_ops(nop8 + gelu_ops(1, 'pk'), uYl * 8 + 7, 'pk')
    else:
        gB = place_ops(gelu_ops(1, c['geluB']), uYl * 8 + 7 + 8, c['geluB'])

    def flag_store(half):
        def f(e):
            e.vmem(f'buffer_store_dword v{vNonce}, v{vFlag}, {srd(SRD_WSU)}, s{sF2st[half]} offen sc1', ('F',))
        return f
    for half, gl, lag in ((0, gA, c['flagA_lag']), (1, gB, c['flagB_lag'])):
        j = (gl + 9) // 32 + lag
        extra_vm[j].append(('U', half))
        post_wait[j].append(flag_store(half))
        c[f'flagj{half}'] = j
    at(32 * c['pollX'] - 8, lambda e: e.vmem(f2load[0], ('P', 'x')), prio=6)
    extra_vm[chkX].append(('P', 'x'))
    post_wait[chkX].append(lambda e: check(e, 'x', f2load[0]))
    at(32 * (gY2 - c['pollY_lead']) - 8, lambda e: e.vmem(f2load[1], ('P', 'y')), prio=6)
    extra_vm[chkY].append(('P', 'y'))
    post_wait[chkY].append(lambda e: check(e, 'y', f2load[1]))
    gb2 = (128 + l2) * 8 - 12
    assert gb2 > gB + 1
    for t in range(2):
        for k in range(4):
            at(gb2 + t, (lambda e, t=t, k=k: e(f'v_lshlrev_b32 v{vTmp+4*t+k}, 16, v{vB2[t]}')), prio=1)
    gP = jXlast * 8 + 7 + 8
    for k in range(8):
        at(gP + 2 * k, (lambda e, k=k: e.vmem(
            f'buffer_store_dwordx4 v[{vAcc[0]+4*k}:{vAcc[0]+4*k+3}], v{vL16}, {srd(SRD_WS)}, s{sPown if k < 4 else sPown2} offen offset:{(k & 3)*1024} sc1', ('Q',))), prio=6)
    j3 = (gP + 14 + 9) // 32 + c['flag3_lag']
    extra_vm[j3].append(('Q',))
    post_wait[j3].append(lambda e: e.vmem(f'buffer_store_dword v{vNonce}, v{vFlag}, {srd(SRD_WS)}, s{sF3st} offen sc1', ('F',)))
    assert j3 < NG - c['poll3_lead'], (j3, NG)
    at(32 * (NG - c['poll3_lead']) - 8, lambda e: e.vmem(f3load, ('P', '3')), prio=6)
    extra_vm[chk3].append(('P', '3'))

    def chk3f(e):
        check(e, '3', f3load)
        for k in range(8):
            e.vmem(f'buffer_load_dwordx4 v[{vAcc[0]+4*k}:{vAcc[0]+4*k+3}], v{vL16}, {srd(SRD_WS)}, s{sPpar if k < 4 else sPpar2} offen offset:{(k & 3)*1024} sc1', ('G',))
    post_wait[chk3].append(chk3f)

    def run_gap(g):
        for _, _, f in sorted(fill.pop(g, []), key=lambda x: x[:2]):
            f(e)

    for g in range(-9, 0):
        run_gap(g)
    ORD = [(0, 0), (0, 1), (1, 1), (1, 0), (2, 0), (2, 1), (3, 1), (3, 0)]
    for ui, (gm, h, n) in enumerate(units):
        b = n + 64 * gm
        for q, (i, t) in enumerate(ORD):
            m = ui * 8 + q
            e.wait(lg=lambda x: x == ('R', ui, i) or x == ('T', b, t))
            acc = vAcc[h] + (2 * i + t) * 4
            D = f'v[{acc}:{acc+3}]'
            if n == 0 and first_use_of_acc(units, ui):
                C = '0' if (gm, h) == (1, 0) else f'v[{vTmp+4*t}:{vTmp+4*t+3}]'
            else:
                C = D
            r = vBuf + ((4 * ui + i) % 8) * 4
            act = f'v[{r}:{r+3}]'
            w = fifo_reg(b % NF, 4 * t, 4)
            if gm == 0:
                e(f'v_mfma_f32_16x16x32_bf16 {D}, {w}, {act}, {C}')
            else:
                e(f'v_mfma_f32_16x16x32_bf16 {D}, {act}, {w}, {C}')
            run_gap(m)
    assert not fill, sorted(fill)

    if diag and 'end' in c['stamps']:
        stamp(e, 'end')
    e('s_nop 7')
    e.wait(vm=lambda t: t == ('G',))
    Y, X = vAcc[1], vAcc[0]
    for B in range(2):
        for t in range(2):
            a_, b_ = (2 * (2 * B) + t) * 4, (2 * (2 * B + 1) + t) * 4
            O = vTmp + (2 * B + t) * 4
            for r in range(4):
                e(f'v_add_f32 v{Y+a_+r}, v{Y+a_+r}, v{X+a_+r}')
                e(f'v_add_f32 v{Y+b_+r}, v{Y+b_+r}, v{X+b_+r}')
            for r in range(4):
                e(f'v_cvt_pk_bf16_f32 v{O+r}, v{Y+a_+r}, v{Y+b_+r}')
            e.vmem(f'buffer_store_dwordx4 v[{O}:{O+3}], v{vOut}, {srd(SRD_OUT)}, {"0" if t == 0 else "s%d" % s32k} offen offset:{B*64}', ('O',))
    e(f'''
    s_or_b32 s{T0}, s2, s{sWv}
    s_cmp_lg_u32 s{T0}, 0
    s_cbranch_scc1 L_noepoch
    buffer_store_dword v{vNonce}, v{vFlag}, {srd(SRD_WS)}, 0 offen sc1
    L_noepoch:
    ''')
    if diag:
        e(f'''
        s_waitcnt vmcnt(0)
        s_memrealtime s[100:101]
        s_waitcnt lgkmcnt(0)
        s_cmp_lg_u32 s{sWv}, 0
        s_cbranch_scc1 L_end
        s_lshl_b32 s{T0}, s2, 6
        s_add_u32 s{T0}, s{T0}, {WS_STAMP}
        v_mov_b32 v24, s98
        ''')
        for k in range(8):
            e(f'v_mov_b32 v{25+k}, s{sStamp+2*k}' if k < nstamp[0] else f'v_mov_b32 v{25+k}, 0')
        e(f'v_mov_b32 v33, s100\nv_mov_b32 v34, 0\nv_mov_b32 v35, 0')
        for k in range(3):
            e(f'buffer_store_dwordx4 v[{24+4*k}:{27+4*k}], v{vFlag}, {srd(SRD_WS)}, s{T0} offen offset:{16*k}')
    e('s_endpgm')

    s = Emit()
    s('L_spare:')
    s('s_waitcnt vmcnt(0)')
    s(f'buffer_store_dword v{vNonce}, v{vFlag}, {srd(SRD_WS)}, s{sF1st} offen sc1')
    if diag:
        for k in range(nstamp[0]):
            s(f's_mov_b64 s[{sStamp+2*k}:{sStamp+2*k+1}], 0')
    pend = [p for p in range(32, NP) if DMI[p] < J0]
    inlds = []
    while pend or any(TRI[p] < J0 for p in inlds):
        mv = [p for p in inlds if TRI[p] < J0]
        if mv:
            s('s_waitcnt vmcnt(0)')
            s('s_barrier')
            for p in mv:
                for f in w_tr(p):
                    f(s)
                s('s_waitcnt lgkmcnt(0)')
            s('s_barrier')
            inlds = [p for p in inlds if p not in mv]
        while pend and all((pend[0] - q) % NSLOT for q in inlds):
            p = pend.pop(0)
            for f in w_dma(s, p):
                f(s)
            inlds.append(p)
        if not mv and not pend and not any(TRI[p] < J0 for p in inlds):
            break
    s('s_waitcnt vmcnt(0) lgkmcnt(0)')
    if c['pollX'] < J0 or True:
        pass
    s('s_branch L_join')
    for name, load in spins:
        s(f'''
        L_spin_{name}:
        s_mov_b32 s{sSpin}, {c['spin']}
        L_spinl_{name}:
        s_sleep 1
        {load}
        s_waitcnt vmcnt(0)
        v_cmp_ne_u32 vcc, s{sNonce}, v{vPollD}
        s_cbranch_vccz L_ret_{name}
        s_sub_u32 s{sSpin}, s{sSpin}, 1
        s_cbranch_scc0 L_spinl_{name}
        s_branch L_ret_{name}
        ''')
    s('L_end:')
    s('s_endpgm')

    head = open('standalone__mixer_token_mlp__prompt.s.ref').read().split('\n')
    hdr = [l for l in head if l.startswith(';') and '@launch' not in l and not l.startswith('; Override') and not l.startswith('; grid=')]
    txt = '\n'.join(hdr) + f'\n; @launch grid=(256,1,1) block=(256,1,1) lds={LDS_SIZE}\n'
    txt += '; generated by gen/gen.py (own generator): fused LayerNorm -> GEMM1+gelu -> split-K GEMM2, one persistent launch\n'
    txt += f'''.amdgcn_target "amdgcn-amd-amdhsa--gfx950"
.text
.globl {NAME}
.p2align 8
.type {NAME},@function
{NAME}:
'''
    txt += e.text() + s.text()
    txt += f'''.section .rodata,"a"
.p2align 6
.amdhsa_kernel {NAME}
  .amdhsa_next_free_vgpr 512
  .amdhsa_next_free_sgpr 102
  .amdhsa_accum_offset 256
  .amdhsa_group_segment_fixed_size 0
  .amdhsa_kernarg_size 64
  .amdhsa_user_sgpr_count 2
  .amdhsa_user_sgpr_kernarg_segment_ptr 1
  .amdhsa_system_sgpr_workgroup_id_x 1
.end_amdhsa_kernel
'''
    return txt, c


def first_use_of_acc(units, ui):
    gm, h, n = units[ui]
    return not any(x[:2] == (gm, h) for x in units[:ui])


if __name__ == '__main__':
    import ast
    kw = {}
    out = 'standalone__mixer_token_mlp__prompt.s'
    for a in sys.argv[1:]:
        k, v = a.split('=', 1)
        if k == 'out':
            out = v
        else:
            try:
                kw[k] = ast.literal_eval(v)
            except Exception:
                kw[k] = v
    txt, c = generate(**kw)
    open(out, 'w').write(txt)
    print('TRI', [c['TRI'][p] for p in range(60)])
    print('DMI', [c['DMI'][p] for p in range(60)])
    print('flag intervals', c['flagj0'], c['flagj1'], 'lines', txt.count('\n'))
```
